```python
import torch

def _softmax(x, axis=-1):
    return torch.softmax(x, dim=axis)
def _gelu(x):
    return torch.nn.functional.gelu(x, approximate="tanh")
def _silu(x):
    return torch.nn.functional.silu(x)
def _sigmoid(x):
    return torch.sigmoid(x)
def _layernorm(x, axis=-1, eps=1e-5):
    m = x.mean(dim=axis, keepdim=True)
    v = x.var(dim=axis, keepdim=True, unbiased=False)
    return (x - m) / torch.sqrt(v + eps)
def _scatter_add(tgt, idx, src, axis=0):
    return tgt.clone().index_add_(axis, idx, src)
def _segment_sum(src, seg, n):
    out = torch.zeros((n,) + src.shape[1:], dtype=src.dtype)
    return out.index_add_(0, seg, src)
def _pad(x, pw):
    flat = tuple(v for pair in reversed(pw) for v in pair)
    return torch.nn.functional.pad(x, flat)

kernel_name = 'recurrent_scan__linear_attn_block__glu_gated_swiglu__prompt'

def setup_inputs():

    _w = (lambda a: (lambda t: t.to(torch.bfloat16) if t.is_floating_point() else t)(torch.as_tensor(a)))
    def _A_setup():
        B, S, D = 1, 2048, 1024
        return {
            "x": _w((lambda *s: torch.randn(*s, dtype=torch.bfloat16) * 0.05)(B, S, D)),
            "wqkv": _w((lambda *s: torch.randn(*s, dtype=torch.bfloat16) * 0.8)(D, 3 * D)),
            "wo": _w((lambda *s: torch.randn(*s, dtype=torch.bfloat16) * 0.8)(D, D)),
        }
    _A_in = _A_setup()

    def _B_setup():
        B, S, D, F = 1, 2048, 1024, 3584
        return {
            "x": _w((lambda *s: torch.randn(*s, dtype=torch.bfloat16) * 0.05)(B, S, D)),
            "w1": _w((lambda *s: torch.randn(*s, dtype=torch.bfloat16) * 0.2)(D, F) * (2.0 / D) ** 0.5),
            "w3": _w((lambda *s: torch.randn(*s, dtype=torch.bfloat16) * 0.2)(D, F) * (2.0 / D) ** 0.5),
            "w2": _w((lambda *s: torch.randn(*s, dtype=torch.bfloat16) * 0.2)(F, D) * (2.0 / F) ** 0.5),
        }
    _B_in = _B_setup()

    return {
        "A_x": _A_in["x"],
        "A_wqkv": _A_in["wqkv"],
        "A_wo": _A_in["wo"],
        "B_x": _B_in["x"],
        "B_w1": _B_in["w1"],
        "B_w3": _B_in["w3"],
        "B_w2": _B_in["w2"],
    }

def reference(A_x, A_wqkv, A_wo, B_x, B_w1, B_w3, B_w2):
    def _A_ref(x, wqkv, wo):
        B, S, D = x.shape
        H = 32; Dh = D // H
        qkv = (lambda x, *d: x.permute(*d))((x @ wqkv).reshape(B, S, 3, H, Dh), 2, 0, 3, 1, 4)
        q, k, v = qkv[0], qkv[1], qkv[2]
        phi = lambda t: torch.where(t > 0, t + 1, torch.exp(t)) + 1e-6
        pq, pk = phi(q), phi(k)
        kv = torch.einsum("bhsd,bhse->bhde", pk, v)
        z = torch.einsum("bhsd->bhd", pk)
        num = torch.einsum("bhqd,bhde->bhqe", pq, kv)
        den = torch.einsum("bhqd,bhd->bhq", pq, z)[..., None] + 1e-6
        o = num / den
        return (lambda x, *d: x.permute(*d))(o, 0, 2, 1, 3).reshape(B, S, D) @ wo

    def _B_ref(x, w1, w3, w2):
        gate = torch.einsum("bsd,df->bsf", x, w1)
        up = torch.einsum("bsd,df->bsf", x, w3)
        h = _silu(gate) * up
        out = torch.einsum("bsf,fd->bsd", h, w2)
        return out

    x = A_x
    xn = _layernorm(x, axis=-1)
    s = _A_ref(xn, A_wqkv, A_wo)
    g = _silu(_B_ref(xn, B_w1, B_w3, B_w2))
    return x + s * g
```

```python
import sys, argparse

NAME = "recurrent_scan__linear_attn_block__glu_gated_swiglu__prompt"

HEADER = """; Kernarg layout for this problem (80 bytes, ptrs only, base s[0:1]):
;   offset   8: d_in[1] A_wqkv  shape=(1024, 3072) dtype=bfloat16
"""

WS_XN = 0
WS_KVP = 4 << 20
WS_ZP = 5 << 20
WS_FLAG = 6 << 20
WS_AFR = 8 << 20
AFR_BYTES = 64 * 288 * 1024
LOG2E = 0x3FB8AA3B
NLOG2E = 0xBFB8AA3B
EPS6 = 0x358637BD
EPS5 = 0x3727C5AC


class A:
    def __init__(self):
        self.l = []
        self.nlab = 0

    def __call__(self, s):
        self.l.append("    " + s)

    def raw(self, s):
        self.l.append(s)

    def label(self, s):
        self.l.append(s + ":")

    def c(self, s):
        self.l.append("    ; " + s)

    def newlab(self, p="L"):
        self.nlab += 1
        return "%s_%d" % (p, self.nlab)

    def text(self):
        return "\n".join(self.l) + "\n"


def vr(b, n=1):
    return "v%d" % b if n == 1 else "v[%d:%d]" % (b, b + n - 1)


def ar(b, n=1):
    return "a%d" % b if n == 1 else "a[%d:%d]" % (b, b + n - 1)


def sr(b, n=1):
    return "s%d" % b if n == 1 else "s[%d:%d]" % (b, b + n - 1)


def R(reg, n=1, off=0):
    k, b = reg
    return (vr if k == "v" else ar)(b + off, n)


def srd(a, d, ptr, nbytes, add=0):
    if add:
        a("s_add_u32 %s, %s, 0x%x" % (sr(d), sr(ptr), add))
        a("s_addc_u32 %s, %s, 0" % (sr(d + 1), sr(ptr + 1)))
        a("s_and_b32 %s, %s, 0xffff" % (sr(d + 1), sr(d + 1)))
    else:
        a("s_mov_b32 %s, %s" % (sr(d), sr(ptr)))
        a("s_and_b32 %s, %s, 0xffff" % (sr(d + 1), sr(ptr + 1)))
    a("s_mov_b32 %s, 0x%x" % (sr(d + 2), nbytes))
    a("s_mov_b32 %s, 0x20000" % sr(d + 3))


def kdesc(a, name, nv, accum, ns=102):
    a.raw('.section .rodata,"a"')
    a.raw(".p2align 6")
    a.raw(".amdhsa_kernel %s" % name)
    a.raw("  .amdhsa_next_free_vgpr %d" % nv)
    a.raw("  .amdhsa_next_free_sgpr %d" % ns)
    a.raw("  .amdhsa_accum_offset %d" % accum)
    a.raw("  .amdhsa_group_segment_fixed_size 0")
    a.raw("  .amdhsa_kernarg_size 80")
    a.raw("  .amdhsa_user_sgpr_count 2")
    a.raw("  .amdhsa_user_sgpr_kernarg_segment_ptr 1")
    a.raw("  .amdhsa_system_sgpr_workgroup_id_x 1")
    a.raw("  .amdhsa_float_denorm_mode_32 3")
    a.raw(".end_amdhsa_kernel")
    a.raw(".text")


def kstart(a, name):
    a.raw(".text")
    a.raw(".globl %s" % name)
    a.raw(".p2align 8")
    a.raw(".type %s,@function" % name)
    a.label(name)


def interleave(a, mf, fill):
    for s in fill.get(-1, []):
        a(s)
    for i, m in enumerate(mf):
        a(m)
        for s in fill.get(i, []):
            a(s)


def wave_sum(a, v, t):
    a("s_nop 1")
    a("v_add_f32_dpp %s, %s, %s quad_perm:[1,0,3,2] row_mask:0xf bank_mask:0xf" % (vr(v), vr(v), vr(v)))
    a("s_nop 1")
    a("v_add_f32_dpp %s, %s, %s quad_perm:[2,3,0,1] row_mask:0xf bank_mask:0xf" % (vr(v), vr(v), vr(v)))
    a("s_nop 1")
    a("v_add_f32_dpp %s, %s, %s row_half_mirror row_mask:0xf bank_mask:0xf" % (vr(v), vr(v), vr(v)))
    a("s_nop 1")
    a("v_add_f32_dpp %s, %s, %s row_mirror row_mask:0xf bank_mask:0xf" % (vr(v), vr(v), vr(v)))
    a("v_mov_b32 %s, %s" % (vr(t), vr(v)))
    a("s_nop 1")
    a("v_permlane16_swap_b32 %s, %s" % (vr(t), vr(v)))
    a("s_nop 1")
    a("v_add_f32 %s, %s, %s" % (vr(v), vr(v), vr(t)))
    a("v_mov_b32 %s, %s" % (vr(t), vr(v)))
    a("s_nop 1")
    a("v_permlane32_swap_b32 %s, %s" % (vr(t), vr(v)))
    a("s_nop 1")
    a("v_add_f32 %s, %s, %s" % (vr(v), vr(v), vr(t)))


def rnd_bf16(a, v):
    a("v_cvt_pk_bf16_f32 %s, %s, %s" % (vr(v), vr(v), vr(v)))
    a("v_lshlrev_b32 %s, 16, %s" % (vr(v), vr(v)))


def gen_k0(a):
    name = "ln_kernel"
    kstart(a, name)
    a("s_cmp_ge_u32 s2, 512")
    a("s_cbranch_scc1 L_ln_done")
    a("s_load_dwordx2 s[4:5], s[0:1], 0")
    a("s_load_dwordx2 s[6:7], s[0:1], 72")
    a("v_lshrrev_b32 v1, 6, v0")
    a("v_and_b32 v2, 63, v0")
    a("s_lshl_b32 s3, s2, 2")
    a("v_add_u32 v1, s3, v1")
    a("v_lshlrev_b32 v1, 11, v1")
    a("v_lshl_add_u32 v1, v2, 4, v1")
    a("s_waitcnt lgkmcnt(0)")
    srd(a, 8, 4, 2048 * 1024 * 2)
    srd(a, 12, 6, 2048 * 1024 * 2, WS_XN)
    srd(a, 16, 6, 2048, WS_FLAG)
    a("buffer_load_dwordx4 v[4:7], v1, s[8:11], 0 offen")
    a("buffer_load_dwordx4 v[8:11], v1, s[8:11], 0 offen offset:1024")
    a("s_lshl_b32 s20, s2, 10")
    a("v_lshlrev_b32 v3, 2, v0")
    a("v_add_u32 v3, s20, v3")
    a("v_mov_b32 v12, 0")
    a("s_cmp_ge_u32 s2, 2")
    a("s_cbranch_scc1 L_ln_noflag")
    a("buffer_store_dword v12, v3, s[16:19], 0 offen")
    a.label("L_ln_noflag")
    a("s_waitcnt vmcnt(0)")
    for i in range(8):
        a("v_lshlrev_b32 v%d, 16, v%d" % (16 + 2 * i, 4 + i))
        a("v_and_b32 v%d, 0xffff0000, v%d" % (17 + 2 * i, 4 + i))
    a("v_add_f32 v32, v16, v17")
    for i in range(2, 16):
        a("v_add_f32 v32, v32, v%d" % (16 + i))
    wave_sum(a, 32, 33)
    a("v_mul_f32 v32, 0x3a800000, v32")
    a("v_mov_b32 v34, 0")
    for i in range(16):
        a("v_sub_f32 v35, v%d, v32" % (16 + i))
        a("v_fmac_f32 v34, v35, v35")
    wave_sum(a, 34, 33)
    a("v_mul_f32 v34, 0x3a800000, v34")
    rnd_bf16(a, 34)
    a("v_add_f32 v34, 0x%x, v34" % EPS5)
    rnd_bf16(a, 34)
    a("v_sqrt_f32 v34, v34")
    a("s_nop 0")
    rnd_bf16(a, 34)
    a("v_rcp_f32 v34, v34")
    rnd_bf16(a, 32)
    for i in range(16):
        a("v_sub_f32 v%d, v%d, v32" % (16 + i, 16 + i))
    for i in range(8):
        a("v_cvt_pk_bf16_f32 v%d, v%d, v%d" % (4 + i, 16 + 2 * i, 17 + 2 * i))
    for i in range(8):
        a("v_lshlrev_b32 v%d, 16, v%d" % (16 + 2 * i, 4 + i))
        a("v_and_b32 v%d, 0xffff0000, v%d" % (17 + 2 * i, 4 + i))
    for i in range(16):
        a("v_mul_f32 v%d, v%d, v34" % (16 + i, 16 + i))
    for i in range(8):
        a("v_cvt_pk_bf16_f32 v%d, v%d, v%d" % (4 + i, 16 + 2 * i, 17 + 2 * i))
    a("buffer_store_dwordx4 v[4:7], v1, s[12:15], 0 offen")
    a("buffer_store_dwordx4 v[8:11], v1, s[12:15], 0 offen offset:1024")
    a.label("L_ln_done")
    a("s_endpgm")
    kdesc(a, name, 40, 40, 32)


SLOT = 36992
L_Q = 16384
L_W1 = 22528
L_W3 = 29824
L_SPARE = 4 * SLOT
K1_LDS = L_SPARE + 8192 + 1024


def gen_k1(a, opt):
    name = "gemm1_kernel"
    kstart(a, name)
    S_A, S_Q, S_W1, S_W3, S_AFR, S_KVP, S_ZP, S_FL = 8, 12, 16, 20, 24, 28, 32, 36
    sKA, sKQ, sKF, sCNT, sWV, sRB, sJ, sT0, sT1, sOB = 40, 41, 42, 43, 44, 45, 46, 47, 48, 49
    sC0 = 50
    a("s_cmp_ge_u32 s2, 256")
    a("s_cbranch_scc1 L_k1_done")
    a("s_load_dwordx2 s[4:5], s[0:1], 8")
    a("s_load_dwordx4 s[60:63], s[0:1], 32")
    a("s_load_dwordx2 s[6:7], s[0:1], 72")
    a("v_lshrrev_b32 v1, 6, v0")
    a("v_and_b32 v2, 63, v0")
    a("v_readfirstlane_b32 %s, v1" % sr(sWV))
    a("s_and_b32 %s, s2, 7" % sr(sT0))
    a("s_lshr_b32 %s, s2, 3" % sr(sT1))
    a("s_and_b32 %s, %s, 7" % (sr(sRB), sr(sT1)))
    a("s_lshr_b32 %s, %s, 3" % (sr(sT1), sr(sT1)))
    a("s_lshl_b32 %s, %s, 2" % (sr(sJ), sr(sT0)))
    a("s_add_u32 %s, %s, %s" % (sr(sJ), sr(sJ), sr(sT1)))
    a("s_waitcnt lgkmcnt(0)")
    srd(a, S_A, 6, 2048 * 1024 * 2, WS_XN)
    srd(a, S_Q, 4, 1024 * 3072 * 2)
    srd(a, S_W1, 60, 1024 * 3584 * 2)
    srd(a, S_W3, 62, 1024 * 3584 * 2)
    srd(a, S_AFR, 6, AFR_BYTES, WS_AFR)
    srd(a, S_KVP, 6, 32 * 8 * 4096, WS_KVP)
    srd(a, S_ZP, 6, 32 * 8 * 256, WS_ZP)
    srd(a, S_FL, 6, 2048, WS_FLAG)
    a("s_lshl_b32 %s, %s, 19" % (sr(sKA), sr(sRB)))
    a("s_lshl_b32 %s, %s, 6" % (sr(sKQ), sr(sJ)))
    a("s_mul_i32 %s, %s, 224" % (sr(sKF), sr(sJ)))
    for i, cst in enumerate([NLOG2E, 0x3F800000, LOG2E, EPS6]):
        a("s_mov_b32 %s, 0x%x" % (sr(sC0 + 2 * i), cst))
        a("s_mov_b32 %s, 0x%x" % (sr(sC0 + 2 * i + 1), cst))
    a("v_lshrrev_b32 v3, 2, v2")
    a("v_and_b32 v4, 3, v2")
    a("v_lshrrev_b32 v5, 5, v2")
    a("v_and_b32 v6, 3, v3")
    a("v_bfe_u32 v7, v2, 4, 1")
    for w in range(1, 4):
        a("s_cmp_eq_u32 %s, %d" % (sr(sWV), w))
        a("s_cbranch_scc1 L_k1_w%d" % w)
    for w in range(4):
        a.label("L_k1_w%d" % w)
        k1_wave(a, opt, w, locals())
        a("s_branch L_k1_done") if w < 3 else None
    a.label("L_k1_done")
    a("s_endpgm")
    kdesc(a, name, 512, 256)


def k1_wave(a, opt, w, E):
    S_A, S_Q, S_W1, S_W3, S_AFR, S_KVP, S_ZP, S_FL = [E[k] for k in "S_A S_Q S_W1 S_W3 S_AFR S_KVP S_ZP S_FL".split()]
    sKA, sKQ, sKF, sCNT, sRB, sJ, sT0, sT1, sOB, sC0 = [E[k] for k in "sKA sKQ sKF sCNT sRB sJ sT0 sT1 sOB sC0".split()]
    wm, wn = w & 1, w >> 1
    head = (wn == 0)
    subs = [("k", 0), ("v", 1), ("q", 2), ("f", 0), ("f", 1)] if head else [("f", t) for t in range(2, 7)]
    vXA = 8
    vWQ = 12
    vWF = 14
    vDM = 16
    vT = 26
    FR = 64
    def xfrag(s, mt): return ("v", FR + s * 36 + 4 * mt)
    def wfrag(s, nt): return ("v", FR + s * 36 + 16 + 4 * nt)
    def acc(mt, nt):
        i = nt * 4 + mt
        return ("a", 16 * i) if i < 16 else ("v", 192 + 16 * (i - 16))

    a("v_and_b32 v%d, 31, v2" % vT)
    a("v_lshlrev_b32 v%d, 6, v%d" % (vT, vT))
    for kk in range(2):
        a("v_or_b32 v%d, %d, v5" % (vT + 1, 2 * kk))
        a("v_xor_b32 v%d, v%d, v6" % (vT + 1, vT + 1))
        a("v_lshl_add_u32 v%d, v%d, 4, v%d" % (vT + 1, vT + 1, vT))
        for p in range(2):
            a("v_add_u32 v%d, 0x%x, v%d" % (vXA + 2 * kk + p, wm * 128 * 64 + 2 * p * SLOT, vT + 1))
    a("v_lshl_add_u32 v%d, v5, 3, v6" % vT)
    if head:
        a("v_lshlrev_b32 v%d, 6, v%d" % (vT + 1, vT))
        a("v_lshl_add_u32 v%d, v7, 5, v%d" % (vT + 1, vT + 1))
        a("v_lshl_add_u32 v%d, v4, 3, v%d" % (vT + 1, vT + 1))
        for p in range(2):
            a("v_add_u32 v%d, 0x%x, v%d" % (vWQ + p, L_Q + 2 * p * SLOT, vT + 1))
    a("v_mul_u32_u24 v%d, 224, v%d" % (vT + 1, vT))
    a("v_mul_u32_u24 v%d, %d, v7" % (vT + 2, L_W3 - L_W1))
    a("v_add_u32 v%d, v%d, v%d" % (vT + 1, vT + 1, vT + 2))
    a("v_lshl_add_u32 v%d, v4, 3, v%d" % (vT + 1, vT + 1))
    for p in range(2):
        a("v_add_u32 v%d, 0x%x, v%d" % (vWF + p, L_W1 + 2 * p * SLOT, vT + 1))

    jobsB = [("q", i) for i in range(6)] + [("w1", i) for i in range(7)] + [("w3", i) for i in range(7)]
    jobs = [("a", 4 * w + i) for i in range(4)] + jobsB[5 * w:5 * w + 5]
    SEC = [1, 2, 0]
    def job_lds(j):
        t, i = j
        return {"a": 0, "q": L_Q, "w1": L_W1, "w3": L_W3}[t] + 1024 * i
    def job_goff(j, l):
        t, i = j
        if t == "a":
            return (16 * i + (l >> 2)) * 2048 + (((l & 3) ^ ((l >> 4) & 3)) << 4)
        if t == "q":
            return (16 * (i & 1) + (l >> 2)) * 6144 + SEC[i >> 1] * 2048 + (l & 3) * 16
        q = 64 * i + l
        return (q // 14) * 7168 + (q % 14) * 16
    groups = []
    base = None
    for j in jobs:
        lo = job_lds(j)
        mn = min(job_goff(j, l) for l in range(64))
        if base is None or lo - base > 4095 or lo < base or mn < lo - base:
            base = lo
        groups.append((base, lo - base))
    for n, j in enumerate(jobs):
        t, i = j
        d = groups[n][1]
        v = vDM + n
        if t == "a":
            a("v_bfe_u32 v%d, v2, 4, 2" % vT)
            a("v_xor_b32 v%d, v%d, v4" % (vT, vT))
            a("v_lshlrev_b32 v%d, 4, v%d" % (vT, vT))
            a("v_lshl_add_u32 v%d, v3, 11, v%d" % (vT, vT))
            a("v_add_u32 v%d, 0x%x, v%d" % (v, 16 * i * 2048 - d, vT))
        elif t == "q":
            a("v_mul_u32_u24 v%d, 6144, v3" % vT)
            a("v_lshl_add_u32 v%d, v4, 4, v%d" % (vT, vT))
            a("v_add_u32 v%d, 0x%x, v%d" % (v, 16 * (i & 1) * 6144 + SEC[i >> 1] * 2048 - d, vT))
        else:
            for q in range(448):
                assert (q * 4682) >> 16 == q // 14
            a("v_add_u32 v%d, %d, v2" % (vT, 64 * i))
            a("v_mul_u32_u24 v%d, 4682, v%d" % (vT + 1, vT))
            a("v_lshrrev_b32 v%d, 16, v%d" % (vT + 1, vT + 1))
            a("v_mul_u32_u24 v%d, 14, v%d" % (vT + 2, vT + 1))
            a("v_sub_u32 v%d, v%d, v%d" % (vT, vT, vT + 2))
            a("v_mul_u32_u24 v%d, 7168, v%d" % (vT + 1, vT + 1))
            a("v_lshl_add_u32 v%d, v%d, 4, v%d" % (vT, vT, vT + 1))
            if d:
                a("v_subrev_u32 v%d, %d, v%d" % (v, d, vT))
            else:
                a("v_mov_b32 v%d, v%d" % (v, vT))

    def dma(n, slot, need_m0):
        t, i = jobs[n]
        b, d = groups[n]
        out = []
        if need_m0:
            out.append("s_mov_b32 m0, 0x%x" % (slot * SLOT + b))
            out.append("s_nop 0")
        s_, so = {"a": (S_A, sKA), "q": (S_Q, sKQ), "w1": (S_W1, sKF), "w3": (S_W3, sKF)}[t]
        out.append("buffer_load_dwordx4 v%d, %s, %s offen offset:%d lds" % (vDM + n, sr(s_, 4), sr(so), d))
        return out

    def dma_list(ns, slot):
        res = []
        prev = None
        for n in ns:
            res.append(dma(n, slot, groups[n][0] != prev))
            prev = groups[n][0]
        return res

    def adv():
        return ["s_add_u32 %s, %s, 64" % (sr(sKA), sr(sKA)),
                "s_add_u32 %s, %s, %d" % (sr(sKQ), sr(sKQ), 32 * 6144),
                "s_add_u32 %s, %s, %d" % (sr(sKF), sr(sKF), 32 * 7168)]

    NJ = len(jobs)
    part1 = list(range(0, opt.n1))
    part2 = list(range(opt.n1, NJ))

    def reads(s, slot, kk):
        out = []
        p, lo = slot >> 1, (slot & 1) * SLOT
        xs = ["ds_read_b128 %s, v%d offset:%d" % (R(xfrag(s, mt), 4), vXA + 2 * kk + p, lo + mt * 2048) for mt in range(4)]
        ws_ = []
        for nt, (ty, t) in enumerate(subs):
            for i in range(2):
                if ty == "f":
                    ws_.append("ds_read_b64_tr_b16 %s, v%d offset:%d" % (R(wfrag(s, nt), 2, 2 * i), vWF + p, lo + t * 32 + (16 * kk + 4 * i) * 224))
                else:
                    ws_.append("ds_read_b64_tr_b16 %s, v%d offset:%d" % (R(wfrag(s, nt), 2, 2 * i), vWQ + p, lo + t * 2048 + (16 * kk + 4 * i) * 64))
        return ws_[0:2] + xs + ws_[2:]

    def mfmas(s):
        out = []
        for nt, (ty, t) in enumerate(subs):
            for mt in range(4):
                x, wf, c = R(xfrag(s, mt), 4), R(wfrag(s, nt), 4), R(acc(mt, nt), 16)
                if ty in "kv":
                    out.append("v_mfma_f32_32x32x16_bf16 %s, %s, %s, %s" % (c, x, wf, c))
                else:
                    out.append("v_mfma_f32_32x32x16_bf16 %s, %s, %s, %s" % (c, wf, x, c))
        return out

    def phase(s, rd, dm, pre=()):
        fill = {}
        if opt.nomfma:
            mf = ["s_nop 0"] * 20
        else:
            mf = mfmas(s)
        if opt.nolds:
            rd = []
        if opt.nodma:
            dm = []
        fill[-1] = list(pre)
        for i, r_ in enumerate(rd):
            fill.setdefault(i, []).append(r_)
        if dm:
            step = 20.0 / len(dm)
            for i, g in enumerate(dm):
                fill.setdefault(min(19, int(i * step + opt.dmaoff)), []).extend(g)
        interleave(a, mf, fill)

    for u in range(4):
        ns = list(range(NJ)) if u < 3 else part1
        for g in dma_list(ns, u):
            for s_ in g:
                a(s_)
        if u < 3:
            for s_ in adv():
                a(s_)
    for i in range(256):
        a("v_accvgpr_write_b32 a%d, 0" % i)
    for i in range(192, 256):
        a("v_mov_b32 v%d, 0" % i)
    a("s_waitcnt vmcnt(%d)" % (2 * NJ + len(part1)))
    a("s_barrier")
    for r_ in reads(0, 0, 0):
        a(r_)
    a("s_mov_b32 %s, 7" % sr(sCNT))
    a("s_waitcnt lgkmcnt(0)")
    loop = "L_k1_loop%d" % w
    a.raw(".p2align 6")
    a.label(loop)

    def unit(slot, dma0, dma1, vm, last=False):
        phase(0, reads(1, slot, 1), dma_list(part2, (slot + 3) & 3) if dma0 else [])
        if last:
            a("s_waitcnt lgkmcnt(0)")
            phase(1, [], [])
            return
        a("s_waitcnt vmcnt(%d) lgkmcnt(0)" % vm)
        a("s_barrier")
        phase(1, reads(0, (slot + 1) & 3, 0), dma_list(part1, slot) if dma1 else [], pre=adv() if dma1 else [])
        a("s_waitcnt lgkmcnt(0)")

    for slot in range(4):
        unit(slot, True, True, 2 * NJ)
    a("s_sub_u32 %s, %s, 1" % (sr(sCNT), sr(sCNT)))
    a("s_cmp_lg_u32 %s, 0" % sr(sCNT))
    a("s_cbranch_scc1 %s" % loop)
    unit(0, True, False, 2 * NJ)
    unit(1, False, False, NJ)
    unit(2, False, False, 0)
    unit(3, False, False, 0, last=True)
    a("s_nop 15")
    a("s_nop 3")

    if opt.noepi:
        return
    vL16 = 8
    a("v_lshlrev_b32 v%d, 4, v2" % vL16)
    a("s_mul_i32 %s, %s, %d" % (sr(sOB), sr(sRB), 8 * 288 * 1024))
    a("s_mul_i32 %s, %s, %d" % (sr(sT0), sr(sJ), 7 * 1024))
    a("s_add_u32 %s, %s, %s" % (sr(sOB), sr(sOB), sr(sT0)))
    if wm:
        a("s_add_u32 %s, %s, %d" % (sr(sOB), sr(sOB), 4 * 288 * 1024))
    NL2E, ONE, L2E, EPS = sr(sC0, 2), sr(sC0 + 2, 2), sr(sC0 + 4, 2), sr(sC0 + 6, 2)

    def get16(c, dst):
        if c[0] == "v":
            return c[1]
        for i in range(16):
            a("v_accvgpr_read_b32 v%d, a%d" % (dst + i, c[1] + i))
        return dst

    epi_n = [0]

    def f_epi(mt, nt, t):
        par = epi_n[0] & 1
        epi_n[0] += 1
        tb = 16 + par * 32
        g = get16(acc(mt, nt), tb)
        e = tb + 16
        o = tb + 24
        for i in range(0, 8, 2):
            a("v_pk_mul_f32 %s, %s, %s" % (vr(e + i, 2), vr(g + i, 2), NL2E))
        for i in range(8):
            a("v_exp_f32 v%d, v%d" % (e + i, e + i))
        for i in range(0, 8, 2):
            a("v_pk_mul_f32 %s, %s, %s" % (vr(g + i, 2), vr(g + i, 2), vr(g + 8 + i, 2)))
        for i in range(0, 8, 2):
            a("v_pk_add_f32 %s, %s, %s" % (vr(e + i, 2), vr(e + i, 2), ONE))
        for i in range(8):
            a("v_rcp_f32 v%d, v%d" % (e + i, e + i))
        a("s_add_u32 %s, %s, %d" % (sr(sT0), sr(sOB), mt * 288 * 1024 + t * 1024))
        for i in range(0, 8, 2):
            a("v_pk_mul_f32 %s, %s, %s" % (vr(g + i, 2), vr(g + i, 2), vr(e + i, 2)))
        for i in range(4):
            a("v_cvt_pk_bf16_f32 v%d, v%d, v%d" % (o + i, g + 2 * i, g + 2 * i + 1))
        a("buffer_store_dwordx4 %s, v%d, %s, %s offen" % (vr(o, 4), vL16, sr(S_AFR, 4), sr(sT0)))

    def phi16(g, e, out):
        for i in range(0, 16, 2):
            a("v_pk_mul_f32 %s, %s, %s" % (vr(e + i, 2), vr(g + i, 2), L2E))
        for i in range(16):
            a("v_min_f32 v%d, 0, v%d" % (e + i, e + i))
        for i in range(16):
            a("v_exp_f32 v%d, v%d" % (e + i, e + i))
        for i in range(16):
            a("v_max_f32 v%d, 0, v%d" % (g + i, g + i))
        for i in range(0, 16, 2):
            a("v_pk_add_f32 %s, %s, %s" % (vr(g + i, 2), vr(g + i, 2), vr(e + i, 2)))
        for i in range(0, 16, 2):
            a("v_pk_add_f32 %s, %s, %s" % (vr(g + i, 2), vr(g + i, 2), EPS))
        for i in range(8):
            a("v_cvt_pk_bf16_f32 v%d, v%d, v%d" % (out + i, g + 2 * i, g + 2 * i + 1))

    if not head:
        n = 0
        for nt, (ty, t) in enumerate(subs):
            for mt in range(4):
                f_epi(mt, nt, t)
                n += 1
                if n == 5:
                    a("s_barrier")
        return

    KV = 96
    ZA = 112
    ONES = 128
    PK = 132
    VV = 140
    PQ = 148
    for i in range(4):
        a("v_mov_b32 v%d, 0x3f803f80" % (ONES + i))
    for mt in range(4):
        g = get16(acc(mt, 0), 16)
        phi16(g, 32, PK)
        g = get16(acc(mt, 1), 48)
        for i in range(8):
            a("v_cvt_pk_bf16_f32 v%d, v%d, v%d" % (VV + i, g + 2 * i, g + 2 * i + 1))
        a("s_nop 1")
        for hf in range(2):
            c = "0" if (mt == 0 and hf == 0) else vr(KV, 16)
            a("v_mfma_f32_32x32x16_bf16 %s, %s, %s, %s" % (vr(KV, 16), vr(PK + 4 * hf, 4), vr(VV + 4 * hf, 4), c))
        for hf in range(2):
            c = "0" if (mt == 0 and hf == 0) else vr(ZA, 16)
            a("v_mfma_f32_32x32x16_bf16 %s, %s, %s, %s" % (vr(ZA, 16), vr(ONES, 4), vr(PK + 4 * hf, 4), c))
        a("s_nop 7")
    a("s_nop 15")
    a("s_nop 3")
    vLS = 9
    a("v_add_u32 v%d, 0x%x, v%d" % (vLS, L_SPARE, vL16))
    vL4 = 10
    a("v_lshlrev_b32 v%d, 2, v2" % vL4)
    a("v_add_u32 v%d, 0x%x, v%d" % (11, L_SPARE + 4096, vL4))
    if wm == 1:
        for i in range(4):
            a("ds_write_b128 v%d, %s offset:%d" % (vLS, vr(KV + 4 * i, 4), 1024 * i))
        a("ds_write_b32 v11, v%d" % ZA)
        a("s_waitcnt lgkmcnt(0)")
        a("s_barrier")
    else:
        a("s_barrier")
        for i in range(4):
            a("ds_read_b128 %s, v%d offset:%d" % (vr(16 + 4 * i, 4), vLS, 1024 * i))
        a("ds_read_b32 v32, v11")
        a("s_waitcnt lgkmcnt(0)")
        for i in range(0, 16, 2):
            a("v_pk_add_f32 %s, %s, %s" % (vr(KV + i, 2), vr(KV + i, 2), vr(16 + i, 2)))
        a("v_add_f32 v%d, v%d, v32" % (ZA, ZA))
        a("s_lshl_b32 %s, %s, 3" % (sr(sT0), sr(sJ)))
        a("s_add_u32 %s, %s, %s" % (sr(sT0), sr(sT0), sr(sRB)))
        a("s_lshl_b32 %s, %s, 8" % (sr(sT1), sr(sT0)))
        a("s_lshl_b32 %s, %s, 12" % (sr(sT0), sr(sT0)))
        for i in range(4):
            a("buffer_store_dwordx4 %s, v%d, %s, %s offen offset:%d sc1" % (vr(KV + 4 * i, 4), vL16, sr(S_KVP, 4), sr(sT0), 1024 * i))
        a("buffer_store_dword v%d, v%d, %s, %s offen sc1" % (ZA, vL4, sr(S_ZP, 4), sr(sT1)))
    for mt in range(4):
        g = get16(acc(mt, 2), 16)
        phi16(g, 32, PQ + 8 * mt)
    if wm == 0:
        a("s_waitcnt vmcnt(0)")
        a("s_lshl_b32 %s, %s, 6" % (sr(sT0), sr(sJ)))
        a("s_lshl_b32 %s, %s, 2" % (sr(sT1), sr(sRB)))
        a("s_add_u32 %s, %s, %s" % (sr(sT0), sr(sT0), sr(sT1)))
        a("v_mov_b32 v12, 0")
        a("v_mov_b32 v13, 1")
        a("s_mov_b64 exec, 1")
        a("buffer_store_dword v13, v12, %s, %s offen sc1" % (sr(S_FL, 4), sr(sT0)))
        a("s_mov_b64 exec, -1")
    for nt in (3, 4):
        for mt in range(4):
            f_epi(mt, nt, subs[nt][1])
    a("s_lshl_b32 %s, %s, 6" % (sr(sT0), sr(sJ)))
    a("v_and_b32 v12, 7, v2")
    a("v_lshlrev_b32 v12, 2, v12")
    a("s_mov_b32 %s, 0x40000" % sr(sCNT))
    pl = "L_k1_poll%d" % w
    pd = "L_k1_polld%d" % w
    a.label(pl)
    a("buffer_load_dword v13, v12, %s, %s offen sc1" % (sr(S_FL, 4), sr(sT0)))
    a("s_waitcnt vmcnt(0)")
    a("v_cmp_ne_u32 vcc, 1, v13")
    a("s_nop 4")
    a("s_cbranch_vccz %s" % pd)
    a("s_sleep 2")
    a("s_sub_u32 %s, %s, 1" % (sr(sCNT), sr(sCNT)))
    a("s_cmp_lg_u32 %s, 0" % sr(sCNT))
    a("s_cbranch_scc1 %s" % pl)
    a.label(pd)
    PT = 16
    ZT = 180
    a("s_lshl_b32 %s, %s, 15" % (sr(sT0), sr(sJ)))
    a("s_lshl_b32 %s, %s, 11" % (sr(sT1), sr(sJ)))
    for p in range(8):
        a("buffer_load_dword v%d, v%d, %s, %s offen offset:%d sc1" % (ZT + p, vL4, sr(S_ZP, 4), sr(sT1), 256 * p))
    for p in range(8):
        for i in range(4):
            a("buffer_load_dwordx4 %s, v%d, %s, %s offen offset:%d sc1" % (vr(PT + 16 * p + 4 * i, 4), vL16, sr(S_KVP, 4), sr(sT0), 1024 * i))
        a("s_add_u32 %s, %s, 4096" % (sr(sT0), sr(sT0)))
    a("s_waitcnt vmcnt(32)")
    for p in range(1, 8):
        a("v_add_f32 v%d, v%d, v%d" % (ZT, ZT, ZT + p))
    a("v_cvt_pk_bf16_f32 v%d, v%d, v%d" % (ZT, ZT, ZT))
    zl = L_SPARE + 8192 + wm * 128
    a("v_and_b32 v12, 31, v2")
    a("v_lshlrev_b32 v12, 1, v12")
    a("v_add_u32 v12, 0x%x, v12" % zl)
    a("ds_write_b16 v12, v%d" % ZT)
    a("v_lshlrev_b32 v13, 3, v5")
    a("v_add_u32 v13, 0x%x, v13" % zl)
    a("s_waitcnt lgkmcnt(0)")
    AZ = 184
    for i in range(4):
        a("ds_read_b64 %s, v13 offset:%d" % (vr(AZ + 2 * i, 2), 16 * i))
    for p in range(1, 8):
        a("s_waitcnt vmcnt(%d)" % (4 * (7 - p)))
        for i in range(0, 16, 2):
            a("v_pk_add_f32 %s, %s, %s" % (vr(PT + i, 2), vr(PT + i, 2), vr(PT + 16 * p + i, 2)))
    AK = 32
    for i in range(8):
        a("v_cvt_pk_bf16_f32 v%d, v%d, v%d" % (AK + i, PT + 2 * i, PT + 2 * i + 1))
    a("s_waitcnt lgkmcnt(0)")
    a("s_nop 1")
    NU = 48
    DE = 192
    for mt in range(4):
        for hf in range(2):
            c = "0" if hf == 0 else vr(NU + 16 * mt, 16)
            a("v_mfma_f32_32x32x16_bf16 %s, %s, %s, %s" % (vr(NU + 16 * mt, 16), vr(AK + 4 * hf, 4), vr(PQ + 8 * mt + 4 * hf, 4), c))
        for hf in range(2):
            c = "0" if hf == 0 else vr(DE + 16 * mt, 16)
            a("v_mfma_f32_32x32x16_bf16 %s, %s, %s, %s" % (vr(DE + 16 * mt, 16), vr(AZ + 4 * hf, 4), vr(PQ + 8 * mt + 4 * hf, 4), c))
    a("s_nop 15")
    a("s_nop 3")
    a("s_mul_i32 %s, %s, %d" % (sr(sT1), sr(sJ), 5 * 1024))
    a("s_sub_u32 %s, %s, %s" % (sr(sOB), sr(sOB), sr(sT1)))
    a("s_add_u32 %s, %s, %d" % (sr(sOB), sr(sOB), 224 * 1024))
    for mt in range(4):
        d = DE + 16 * mt
        n_ = NU + 16 * mt
        a("v_add_f32 v%d, 0x%x, v%d" % (d, EPS6, d))
        a("v_rcp_f32 v%d, v%d" % (d, d))
        a("s_add_u32 %s, %s, %d" % (sr(sT0), sr(sOB), mt * 288 * 1024))
        a("v_mov_b32 v%d, v%d" % (d + 1, d))
        for i in range(0, 16, 2):
            a("v_pk_mul_f32 %s, %s, %s" % (vr(n_ + i, 2), vr(n_ + i, 2), vr(d, 2)))
        o = d + 4
        for i in range(8):
            a("v_cvt_pk_bf16_f32 v%d, v%d, v%d" % (o + i, n_ + 2 * i, n_ + 2 * i + 1))
        a("buffer_store_dwordx4 %s, v%d, %s, %s offen" % (vr(o, 4), vL16, sr(S_AFR, 4), sr(sT0)))
        a("buffer_store_dwordx4 %s, v%d, %s, %s offen offset:1024" % (vr(o + 4, 4), vL16, sr(S_AFR, 4), sr(sT0)))


RSTR = 272
K2_LDS = 4 * 128 * RSTR


def gen_k2(a, opt):
    name = NAME + "_kernel"
    D = opt.k2d
    kstart(a, name)
    S_A0, S_B, S_X, S_O = 8, 24, 28, 32
    sKA, sKB, sCNT, sWV, sMT, sNT, sT0, sT1, sK0, sNK, sM0 = 40, 41, 42, 43, 44, 45, 46, 47, 48, 49, 50
    sC0 = 52
    a("s_cmp_ge_u32 s2, 256")
    a("s_cbranch_scc1 L_k2_done")
    a("s_load_dwordx2 s[4:5], s[0:1], 0")
    a("s_load_dwordx2 s[60:61], s[0:1], 16")
    a("s_load_dwordx4 s[64:67], s[0:1], 48")
    a("s_load_dwordx2 s[6:7], s[0:1], 72")
    a("v_lshrrev_b32 v1, 6, v0")
    a("v_and_b32 v2, 63, v0")
    a("v_readfirstlane_b32 %s, v1" % sr(sWV))
    a("s_and_b32 %s, s2, 7" % sr(sT0))
    a("s_lshr_b32 %s, s2, 3" % sr(sT1))
    a("s_lshr_b32 %s, %s, 1" % (sr(sMT), sr(sT0)))
    a("s_lshl_b32 %s, %s, 2" % (sr(sMT), sr(sMT)))
    a("s_and_b32 %s, %s, 3" % (sr(sNT), sr(sT1)))
    a("s_add_u32 %s, %s, %s" % (sr(sMT), sr(sMT), sr(sNT)))
    a("s_and_b32 %s, %s, 1" % (sr(sNT), sr(sT0)))
    a("s_lshl_b32 %s, %s, 3" % (sr(sNT), sr(sNT)))
    a("s_lshr_b32 %s, %s, 2" % (sr(sT1), sr(sT1)))
    a("s_add_u32 %s, %s, %s" % (sr(sNT), sr(sNT), sr(sT1)))
    a("s_mul_i32 %s, %s, 75" % (sr(sK0), sr(sWV)))
    a("s_min_u32 %s, %s, 224" % (sr(sK0), sr(sK0)))
    a("s_mov_b32 %s, 75" % sr(sNK))
    a("s_cmp_eq_u32 %s, 2" % sr(sWV))
    a("s_cselect_b32 %s, 74, %s" % (sr(sNK), sr(sNK)))
    a("s_cmp_eq_u32 %s, 3" % sr(sWV))
    a("s_cselect_b32 %s, 64, %s" % (sr(sNK), sr(sNK)))
    a("s_waitcnt lgkmcnt(0)")
    a("s_cselect_b32 s62, s60, s64")
    a("s_cselect_b32 s63, s61, s65")
    a("s_cselect_b32 %s, 0, %s" % (sr(sT0), sr(sK0)))
    a("s_lshl_b32 %s, %s, 15" % (sr(sT0), sr(sT0)))
    a("s_add_u32 %s, s62, %s" % (sr(S_B), sr(sT0)))
    a("s_addc_u32 %s, s63, 0" % sr(S_B + 1))
    a("s_and_b32 %s, %s, 0xffff" % (sr(S_B + 1), sr(S_B + 1)))
    a("s_lshl_b32 %s, %s, 15" % (sr(S_B + 2), sr(sNK)))
    a("s_mov_b32 %s, 0x20000" % sr(S_B + 3))
    a("s_mul_i32 %s, %s, %d" % (sr(sT0), sr(sMT), 4 * 288))
    a("s_add_u32 %s, %s, %s" % (sr(sT0), sr(sT0), sr(sK0)))
    a("s_lshl_b32 %s, %s, 10" % (sr(sT0), sr(sT0)))
    for mt in range(4):
        d = S_A0 + 4 * mt
        a("s_add_u32 %s, %s, 0x%x" % (sr(sT1), sr(sT0), WS_AFR + mt * 288 * 1024))
        a("s_add_u32 %s, s6, %s" % (sr(d), sr(sT1)))
        a("s_addc_u32 %s, s7, 0" % sr(d + 1))
        a("s_and_b32 %s, %s, 0xffff" % (sr(d + 1), sr(d + 1)))
        a("s_lshl_b32 %s, %s, 10" % (sr(d + 2), sr(sNK)))
        a("s_mov_b32 %s, 0x20000" % sr(d + 3))
    srd(a, S_X, 4, 2048 * 1024 * 2)
    srd(a, S_O, 66, 2048 * 1024 * 2)
    a("s_mov_b32 %s, 0x%x" % (sr(sC0), NLOG2E))
    a("s_mov_b32 %s, 0x%x" % (sr(sC0 + 1), NLOG2E))
    a("s_mov_b32 %s, 1.0" % sr(sC0 + 2))
    a("s_mov_b32 %s, 1.0" % sr(sC0 + 3))
    vL16, vB0, vB1, vR0, vR1, vT = 3, 4, 5, 6, 7, 8
    a("v_lshlrev_b32 v%d, 4, v2" % vL16)
    a("v_lshrrev_b32 v%d, 3, v2" % vT)
    a("v_lshlrev_b32 v%d, 11, v%d" % (vT, vT))
    a("v_bfe_u32 v%d, v2, 4, 1" % (vT + 1))
    a("v_lshlrev_b32 v%d, 2, v%d" % (vT + 1, vT + 1))
    a("v_and_b32 v%d, 7, v2" % (vT + 2))
    a("v_xor_b32 v%d, v%d, v%d" % (vT + 1, vT + 1, vT + 2))
    a("v_lshl_add_u32 v%d, v%d, 4, v%d" % (vT, vT + 1, vT))
    a("s_lshl_b32 %s, %s, 7" % (sr(sT0), sr(sNT)))
    a("v_add_u32 v%d, %s, v%d" % (vB0, sr(sT0), vT))
    a("v_add_u32 v%d, %d, v%d" % (vB1, 16384 - 1024, vB0))
    a("s_mul_i32 %s, %s, %d" % (sr(sM0), sr(sWV), D * 2048))
    a("v_lshrrev_b32 v%d, 5, v2" % vT)
    a("v_bfe_u32 v%d, v2, 2, 2" % (vT + 1))
    a("v_lshl_add_u32 v%d, v%d, 2, v%d" % (vT, vT, vT + 1))
    a("v_lshlrev_b32 v%d, 7, v%d" % (vT, vT))
    a("v_bfe_u32 v%d, v2, 3, 1" % (vT + 1))
    a("v_lshl_add_u32 v%d, v%d, 6, v%d" % (vT, vT + 1, vT))
    a("v_bfe_u32 v%d, v2, 4, 1" % (vT + 1))
    a("v_lshl_add_u32 v%d, v%d, 5, v%d" % (vT, vT + 1, vT))
    a("v_and_b32 v%d, 3, v2" % (vT + 1))
    a("v_lshl_add_u32 v%d, v%d, 3, v%d" % (vT, vT + 1, vT))
    a("v_add_u32 v%d, %s, v%d" % (vR0, sr(sM0), vT))
    a("v_xor_b32 v%d, 64, v%d" % (vR1, vR0))
    AR = 64
    BF = 16
    XR = 32
    def afr(slot, mt): return vr(AR + 16 * slot + 4 * mt, 4)
    def bfr(s, nt, i=None):
        return vr(BF + 8 * s + 4 * nt, 4) if i is None else vr(BF + 8 * s + 4 * nt + 2 * i, 2)
    def accr(mt, nt): return ar(16 * (2 * mt + nt), 16)

    def ldB(slot):
        return [["s_add_u32 m0, %s, %d" % (sr(sM0), slot * 2048), "s_nop 0",
                 "buffer_load_dwordx4 v%d, %s, %s offen lds" % (vB0, sr(S_B, 4), sr(sKB))],
                ["buffer_load_dwordx4 v%d, %s, %s offen offset:1024 lds" % (vB1, sr(S_B, 4), sr(sKB))]]
    def ldA(slot, mt):
        return "buffer_load_dwordx4 %s, v%d, %s, %s offen" % (afr(slot, mt), vL16, sr(S_A0 + 4 * mt, 4), sr(sKA))
    def adv():
        return ["s_add_u32 %s, %s, 1024" % (sr(sKA), sr(sKA)), "s_add_u32 %s, %s, 32768" % (sr(sKB), sr(sKB))]
    def rdB(s, slot):
        return ["ds_read_b64_tr_b16 %s, v%d offset:%d" % (bfr(s, nt, i), vR0 + nt, slot * 2048 + i * 1024) for nt in range(2) for i in range(2)]

    a("s_mov_b32 %s, 0" % sr(sKA))
    a("s_mov_b32 %s, 0" % sr(sKB))
    for s_ in range(D):
        for g in ldB(s_):
            for x in g:
                a(x)
        for mt in range(4):
            a(ldA(s_, mt))
        for x in adv():
            a(x)
    for i in range(128):
        a("v_accvgpr_write_b32 a%d, 0" % i)
    a("s_mov_b32 %s, %s" % (sr(sCNT), sr(sNK)))
    a("s_waitcnt vmcnt(%d)" % (6 * D - 2))
    for x in rdB(0, 0):
        a(x)
    assert D % 2 == 0
    a.raw(".p2align 6")
    a.label("L_k2_loop")
    for i in range(D):
        a("s_waitcnt vmcnt(%d) lgkmcnt(0)" % (4 + 6 * (D - 2)))
        mf = []
        for mt in range(4):
            for nt in range(2):
                mf.append("v_mfma_f32_32x32x16_bf16 %s, %s, %s, %s" % (accr(mt, nt), bfr(i & 1, nt), afr(i, mt), accr(mt, nt)))
        rd = rdB((i + 1) & 1, (i + 1) % D)
        lb = ldB(i)
        fill = {-1: rd[0:2], 0: rd[2:4] + lb[0], 1: lb[1] + [ldA(i, 0)], 3: [ldA(i, 1)], 5: [ldA(i, 2)],
                7: [ldA(i, 3)] + adv() + ["s_sub_u32 %s, %s, 1" % (sr(sCNT), sr(sCNT)), "s_cmp_eq_u32 %s, 0" % sr(sCNT), "s_cbranch_scc1 L_k2_exit"]}
        interleave(a, mf, fill)
    a("s_branch L_k2_loop")
    a.label("L_k2_exit")
    vXO = 50
    a("s_lshl_b32 %s, %s, 2" % (sr(sT0), sr(sMT)))
    a("s_add_u32 %s, %s, %s" % (sr(sT0), sr(sT0), sr(sWV)))
    a("s_lshl_b32 %s, %s, 16" % (sr(sT0), sr(sT0)))
    a("s_lshl_b32 %s, %s, 7" % (sr(sT1), sr(sNT)))
    a("s_add_u32 %s, %s, %s" % (sr(sT0), sr(sT0), sr(sT1)))
    a("v_lshrrev_b32 v%d, 3, v2" % vT)
    a("v_and_b32 v%d, 7, v2" % (vT + 2))
    a("v_lshlrev_b32 v%d, 11, v%d" % (vXO, vT))
    a("v_lshl_add_u32 v%d, v%d, 4, v%d" % (vXO, vT + 2, vXO))
    a("v_add_u32 v%d, %s, v%d" % (vXO, sr(sT0), vXO))
    a("s_waitcnt vmcnt(0) lgkmcnt(0)")
    for it in range(4):
        a("v_add_u32 v%d, %d, v%d" % (12 + it, it * 8 * 2048, vXO))
    for it in range(4):
        a("buffer_load_dwordx4 %s, v%d, %s, 0 offen" % (vr(XR + 4 * it, 4), 12 + it, sr(S_X, 4)))
    a("s_barrier")
    vW = 49
    a("v_and_b32 v%d, 31, v2" % vW)
    a("v_mul_u32_u24 v%d, %d, v%d" % (vW, RSTR, vW))
    a("v_lshrrev_b32 v%d, 5, v2" % (vT + 1))
    a("v_lshl_add_u32 v%d, v%d, 4, v%d" % (vW, vT + 1, vW))
    a("s_mul_i32 %s, %s, %d" % (sr(sT0), sr(sWV), 128 * RSTR))
    a("v_add_u32 v%d, %s, v%d" % (vW, sr(sT0), vW))
    for mt in range(4):
        for nt in range(2):
            for q in range(4):
                a("ds_write_b128 v%d, %s offset:%d" % (vW, ar(16 * (2 * mt + nt) + 4 * q, 4), mt * 32 * RSTR + nt * 128 + q * 32))
    a("s_waitcnt lgkmcnt(0)")
    a("s_barrier")
    vRd = 48
    a("v_mul_u32_u24 v%d, %d, v%d" % (vRd, RSTR, vT))
    a("v_lshl_add_u32 v%d, v%d, 5, v%d" % (vRd, vT + 2, vRd))
    a("s_mul_i32 %s, %s, %d" % (sr(sT0), sr(sWV), 32 * RSTR))
    a("v_add_u32 v%d, %s, v%d" % (vRd, sr(sT0), vRd))
    a("v_add_u32 v%d, %d, v%d" % (vW, 2 * 128 * RSTR, vRd))
    P = 64
    for it in range(4):
        for p in range(4):
            for hf in range(2):
                a("ds_read_b128 %s, v%d offset:%d" % (vr(P + 32 * it + 8 * p + 4 * hf, 4), vRd if p < 2 else vW, (p & 1) * 128 * RSTR + it * 8 * RSTR + hf * 16))
    NL2E, ONE = sr(sC0, 2), sr(sC0 + 2, 2)
    for it in range(4):
        b = P + 32 * it
        a("s_waitcnt lgkmcnt(%d)" % min(15, 8 * (3 - it)))
        if it == 0:
            a("s_waitcnt lgkmcnt(15)")
        for p in (1, 2):
            for i in range(0, 8, 2):
                a("v_pk_add_f32 %s, %s, %s" % (vr(b + i, 2), vr(b + i, 2), vr(b + 8 * p + i, 2)))
        e = b + 8
        for i in range(0, 8, 2):
            a("v_pk_mul_f32 %s, %s, %s" % (vr(e + i, 2), vr(b + i, 2), NL2E))
        for i in range(8):
            a("v_exp_f32 v%d, v%d" % (e + i, e + i))
        for i in range(0, 8, 2):
            a("v_pk_mul_f32 %s, %s, %s" % (vr(b + i, 2), vr(b + i, 2), vr(b + 24 + i, 2)))
        for i in range(0, 8, 2):
            a("v_pk_add_f32 %s, %s, %s" % (vr(e + i, 2), vr(e + i, 2), ONE))
        for i in range(8):
            a("v_rcp_f32 v%d, v%d" % (e + i, e + i))
        if it == 0:
            a("s_waitcnt vmcnt(0)")
        xx = b + 16
        for i in range(4):
            a("v_lshlrev_b32 v%d, 16, v%d" % (xx + 2 * i, XR + 4 * it + i))
            a("v_and_b32 v%d, 0xffff0000, v%d" % (xx + 2 * i + 1, XR + 4 * it + i))
        for i in range(0, 8, 2):
            a("v_pk_fma_f32 %s, %s, %s, %s" % (vr(b + i, 2), vr(b + i, 2), vr(e + i, 2), vr(xx + i, 2)))
        for i in range(4):
            a("v_cvt_pk_bf16_f32 v%d, v%d, v%d" % (b + 24 + i, b + 2 * i, b + 2 * i + 1))
        a("buffer_store_dwordx4 %s, v%d, %s, 0 offen" % (vr(b + 24, 4), 12 + it, sr(S_O, 4)))
    a.label("L_k2_done")
    a("s_endpgm")
    kdesc(a, name, 256 + 128, 256)


def main():
    ap = argparse.ArgumentParser()
    ap.add_argument("-o", default="cdna_kernels/%s.s" % NAME)
    ap.add_argument("--n1", type=int, default=5)
    ap.add_argument("--dmaoff", type=float, default=1.0)
    ap.add_argument("--k2d", type=int, default=10)
    ap.add_argument("--nomfma", action="store_true")
    ap.add_argument("--nolds", action="store_true")
    ap.add_argument("--nodma", action="store_true")
    ap.add_argument("--noepi", action="store_true")
    ap.add_argument("--only", default="012")
    opt = ap.parse_args()
    a = A()
    a.raw(HEADER.rstrip("\n"))
    if "0" in opt.only:
        a.raw("; @launch kernel=ln_kernel grid=(512,1,1) block=(256,1,1) lds=0")
    if "1" in opt.only:
        a.raw("; @launch kernel=gemm1_kernel grid=(256,1,1) block=(256,1,1) lds=%d" % K1_LDS)
    if "2" in opt.only:
        a.raw("; @launch kernel=%s_kernel grid=(256,1,1) block=(256,1,1) lds=%d" % (NAME, K2_LDS))
    a.raw('.amdgcn_target "amdgcn-amd-amdhsa--gfx950"')
    gen_k0(a)
    gen_k1(a, opt)
    gen_k2(a, opt)
    open(opt.o, "w").write(a.text())


main()
```
